```python
import torch

def _softmax(x, axis=-1):
    return torch.softmax(x, dim=axis)
def _gelu(x):
    return torch.nn.functional.gelu(x, approximate="tanh")
def _silu(x):
    return torch.nn.functional.silu(x)
def _sigmoid(x):
    return torch.sigmoid(x)
def _layernorm(x, axis=-1, eps=1e-5):
    m = x.mean(dim=axis, keepdim=True)
    v = x.var(dim=axis, keepdim=True, unbiased=False)
    return (x - m) / torch.sqrt(v + eps)
def _scatter_add(tgt, idx, src, axis=0):
    return tgt.clone().index_add_(axis, idx, src)
def _segment_sum(src, seg, n):
    out = torch.zeros((n,) + src.shape[1:], dtype=src.dtype)
    return out.index_add_(0, seg, src)
def _pad(x, pw):
    flat = tuple(v for pair in reversed(pw) for v in pair)
    return torch.nn.functional.pad(x, flat)

kernel_name = 'standalone__glu_gated_geglu__prompt'

def setup_inputs():

    _w = (lambda a: (lambda t: t.to(torch.bfloat16) if t.is_floating_point() else t)(torch.as_tensor(a)))
    B, S, Dm, Df = 1, 2048, 512, 1792
    return {
        "x": _w((lambda *s: torch.randn(*s, dtype=torch.bfloat16) * 0.05)(B, S, Dm)),
        "w_gate": _w((lambda *s: torch.randn(*s, dtype=torch.bfloat16) * 0.05)(Dm, Df) * (Dm ** -0.5)),
        "w_up": _w((lambda *s: torch.randn(*s, dtype=torch.bfloat16) * 0.05)(Dm, Df) * (Dm ** -0.5)),
        "w_down": _w((lambda *s: torch.randn(*s, dtype=torch.bfloat16) * 0.05)(Df, Dm) * (Df ** -0.5)),
    }

def reference(x, w_gate, w_up, w_down):
    g = torch.einsum("bsd,df->bsf", x, w_gate)
    u = torch.einsum("bsd,df->bsf", x, w_up)
    h = _gelu(g) * u
    return torch.einsum("bsf,fd->bsd", h, w_down)
```

```python
import struct

WS_BYTES = 268435456
STAMP_OFF = WS_BYTES - (1 << 20)

HEADER = """; Kernarg layout for this problem (56 bytes, ptrs only, base s[0:1]):
"""


def f32(x):
    return "0x%08x" % struct.unpack("<I", struct.pack("<f", x))[0]


def vr(base, n=1, p="v"):
    return f"{p}{base}" if n == 1 else f"{p}[{base}:{base + n - 1}]"


def sr(base, n=1):
    return f"s{base}" if n == 1 else f"s[{base}:{base + n - 1}]"


class Asm:
    def __init__(self):
        self.lines = []
        self.lg = []
        self.vm = []
        self.nstamp = 0

    def raw(self, s):
        self.lines.append(s)

    def __call__(self, s):
        self.lines.append("    " + s)

    def label(self, s):
        self.lines.append(s + ":")

    def comment(self, s):
        self.lines.append("    ; " + s)

    def lds(self, s, tag):
        self(s)
        self.lg.append(tag)

    def vmem(self, s, tag):
        self(s)
        self.vm.append(tag)

    def _need(self, q, tags, cap):
        last = -1
        for i, t in enumerate(q):
            if t in tags:
                last = i
        if last < 0:
            return None
        n = len(q) - 1 - last
        n = min(n, cap)
        del q[: len(q) - n]
        return n

    def wait(self, lg=(), vm=()):
        parts = []
        n = self._need(self.vm, set(vm), 63)
        if n is not None:
            parts.append(f"vmcnt({n})")
        n = self._need(self.lg, set(lg), 15)
        if n is not None:
            parts.append(f"lgkmcnt({n})")
        if parts:
            self("s_waitcnt " + " ".join(parts))

    def wait_all(self, lg=False, vm=False):
        parts = []
        if vm:
            parts.append("vmcnt(0)")
            self.vm = []
        if lg:
            parts.append("lgkmcnt(0)")
            self.lg = []
        self("s_waitcnt " + " ".join(parts))

    def srd(self, d, base, nbytes):
        self(f"s_mov_b32 s{d}, s{base}")
        self(f"s_and_b32 s{d + 1}, s{base + 1}, 0xffff")
        self(f"s_mov_b32 s{d + 2}, {nbytes}")
        self(f"s_mov_b32 s{d + 3}, 0x20000")

    def text(self):
        return "\n".join(self.lines) + "\n"


def kernel_begin(a, name):
    a.raw(".text")
    a.raw(f".globl {name}")
    a.raw(".p2align 8")
    a.raw(f".type {name},@function")
    a.raw(f"{name}:")


def kernel_desc(a, name, vgpr, accum, sgpr=96):
    a.raw('.section .rodata,"a"')
    a.raw(".p2align 6")
    a.raw(f".amdhsa_kernel {name}")
    a.raw(f"  .amdhsa_next_free_vgpr {vgpr}")
    a.raw(f"  .amdhsa_next_free_sgpr {sgpr}")
    a.raw(f"  .amdhsa_accum_offset {accum}")
    a.raw("  .amdhsa_group_segment_fixed_size 0")
    a.raw("  .amdhsa_kernarg_size 56")
    a.raw("  .amdhsa_user_sgpr_count 2")
    a.raw("  .amdhsa_user_sgpr_kernarg_segment_ptr 1")
    a.raw("  .amdhsa_system_sgpr_workgroup_id_x 1")
    a.raw("  .amdhsa_float_denorm_mode_32 3")
    a.raw(".end_amdhsa_kernel")
```

```python
import math
import sys
from asmlib import *

DIAG = "--diag" in sys.argv
OUT = [a for a in sys.argv[1:] if not a.startswith("--")][0]
HST = ""
for o in sys.argv:
    if o.startswith("--hst="):
        HST = " " + o[6:].replace(",", " ")

C0 = -2.0 * math.sqrt(2.0 / math.pi) * math.log2(math.e)
C1 = C0 * 0.044715
NSTAMP_WORDS = 32
STAMP_S0 = 60


def stamp(a):
    if not DIAG:
        return
    s = STAMP_S0 + 4 * a.nstamp
    a(f"s_memrealtime s[{s}:{s + 1}]")
    a(f"s_memtime s[{s + 2}:{s + 3}]")
    a.nstamp += 1


def stamp_flush(a, first_word, lbl):
    if not DIAG:
        return
    a("s_waitcnt lgkmcnt(0)")
    a("s_cmp_lg_u32 s18, 0")
    a(f"s_cbranch_scc1 {lbl}")
    a(f"s_mul_i32 s40, s2, {NSTAMP_WORDS * 4}")
    a(f"s_add_u32 s40, s40, {STAMP_OFF + first_word * 4}")
    a("v_mov_b32 v1, 0")
    a.srd(36, 16, WS_BYTES)
    for i in range(a.nstamp):
        s = STAMP_S0 + 4 * i
        a(f"v_mov_b32 v2, s{s}")
        a(f"v_mov_b32 v3, s{s + 2}")
        a(f"buffer_store_dwordx2 v[2:3], v1, s[36:39], s40 offen offset:{8 * i}")
        a("s_nop 1")
    a.label(lbl)


def load_args(a):
    a("s_load_dwordx8 s[4:11], s[0:1], 0")
    a("s_load_dwordx4 s[12:15], s[0:1], 32")
    a("s_load_dwordx2 s[16:17], s[0:1], 48")


XB = 0
GB = 49152
UB = 92288
K1_LDS = UB + 3 * 14336
ACC = 16
FR = 128
XRD = 176
WRD = 184
WRS = 185
XOFF = 186
WOFF = 190
VC0 = 197
VC1 = 198
VLANE16 = 199
TMP = 200


def k1(a):
    name = "k1_kernel"
    kernel_begin(a, name)
    a.nstamp = 0
    stamp(a)
    a("s_cmp_ge_u32 s2, 256")
    a("s_cbranch_scc1 K1_END")
    load_args(a)
    a("v_lshrrev_b32 v1, 6, v0")
    a("v_and_b32 v2, 63, v0")
    a("v_readfirstlane_b32 s18, v1")
    a("s_and_b32 s21, s2, 7")
    a("s_lshr_b32 s22, s2, 3")
    a("s_and_b32 s19, s21, 1")
    a("s_lshl_b32 s19, s19, 3")
    a("s_and_b32 s23, s22, 7")
    a("s_add_u32 s19, s19, s23")
    a("s_lshr_b32 s20, s21, 1")
    a("s_lshl_b32 s20, s20, 2")
    a("s_lshr_b32 s23, s22, 3")
    a("s_add_u32 s20, s20, s23")
    a("s_and_b32 s21, s18, 1")
    a("s_lshr_b32 s22, s18, 1")
    a("v_lshrrev_b32 v3, 3, v2")
    a("v_and_b32 v4, 7, v2")
    a("v_lshrrev_b32 v5, 4, v2")
    for j in range(4):
        a(f"v_add_u32 v6, {4 * (j & 1)}, v5")
        a("v_xor_b32 v6, v6, v4")
        a("v_lshlrev_b32 v6, 4, v6")
        a(f"v_lshl_add_u32 v6, v3, 10, v6")
        a(f"v_add_u32 v{XOFF + j}, {j * (8192 - 1024)}, v6")
    a("s_movk_i32 s23, 4682")
    a("s_movk_i32 s40, 3584")
    for j in range(7):
        a(f"v_add_u32 v6, {64 * j}, v2")
        a("v_mul_lo_u32 v7, v6, s23")
        a("v_lshrrev_b32 v7, 16, v7")
        a("v_mul_u32_u24 v8, 14, v7")
        a("v_sub_u32 v8, v6, v8")
        a("v_lshlrev_b32 v8, 4, v8")
        a("v_mad_u32_u24 v8, v7, s40, v8")
        a(f"v_subrev_u32 v{WOFF + j}, {1024 * (j % 4)}, v8")
    a("s_waitcnt lgkmcnt(0)")
    a.srd(24, 4, 2097152)
    a("s_cmp_eq_u32 s22, 0")
    a("s_cselect_b32 s28, s6, s8")
    a("s_cselect_b32 s29, s7, s9")
    a("s_and_b32 s29, s29, 0xffff")
    a("s_mov_b32 s30, 1835008")
    a("s_mov_b32 s31, 0x20000")
    a.srd(32, 16, 2048 * 1792 * 2)
    a("s_lshl_b32 s41, s19, 17")
    a("s_lshl_b32 s23, s18, 15")
    a("s_add_u32 s41, s41, s23")
    a(f"s_mul_i32 s42, s21, {32 * 3584}")
    a("s_mul_i32 s23, s20, 224")
    a("s_add_u32 s42, s42, s23")
    a("s_lshl_b32 s43, s18, 12")
    a(f"s_mul_i32 s44, s22, {UB - GB}")
    a("s_mul_i32 s23, s21, 7168")
    a("s_add_u32 s44, s44, s23")
    a(f"s_add_u32 s44, s44, {GB}")

    def dma_ops(st):
        buf = st % 3
        ops = []
        for j in range(4):
            pre = [f"s_add_u32 m0, s43, {XB + buf * 16384}"] if j == 0 else []
            post = ["s_add_u32 s41, s41, 128"] if j == 3 else []
            ops.append((pre, f"buffer_load_dwordx4 v{XOFF + j}, s[24:27], s41 offen offset:{1024 * j} lds", post))
        for j in range(7):
            pre = [f"s_add_u32 m0, s44, {buf * 14336 + (4096 if j == 4 else 0)}"] if j in (0, 4) else []
            post = [f"s_add_u32 s42, s42, {64 * 3584}"] if j == 6 else []
            ops.append((pre, f"buffer_load_dwordx4 v{WOFF + j}, s[28:31], s42 offen offset:{1024 * (j % 4)} lds", post))
        return ops

    def emit_dma(op, st):
        pre, ins, post = op
        for p in pre:
            a(p)
            a("s_nop 0")
        a.vmem(ins, ("dma", st))
        for p in post:
            a(p)

    for st in range(3):
        for op in dma_ops(st):
            emit_dma(op, st)

    a("v_and_b32 v3, 31, v2")
    a("v_lshrrev_b32 v4, 5, v2")
    a("v_bfe_u32 v5, v3, 1, 3")
    a("v_xor_b32 v5, v5, v4")
    a("v_lshlrev_b32 v5, 4, v5")
    a("v_lshl_add_u32 v5, v3, 7, v5")
    a("s_lshl_b32 s23, s21, 1")
    a("s_add_u32 s45, s23, s22")
    a("s_xor_b32 s46, s45, 1")
    a("s_lshl_b32 s47, s45, 12")
    a("s_lshl_b32 s48, s46, 12")
    for s in range(4):
        a(f"v_xor_b32 v6, {32 * s}, v5")
        a(f"v_add_u32 v{XRD + s}, s47, v6")
        a(f"v_add_u32 v{XRD + 4 + s}, s48, v6")
    a("v_bfe_u32 v3, v2, 4, 1")
    a("v_bfe_u32 v5, v2, 2, 2")
    a("v_and_b32 v6, 3, v2")
    a("v_lshl_add_u32 v5, v4, 3, v5")
    a("v_mul_u32_u24 v5, 224, v5")
    a("v_lshl_add_u32 v5, v6, 3, v5")
    a(f"v_mul_u32_u24 v3, {UB - GB}, v3")
    a("v_add_u32 v5, v5, v3")
    a(f"v_add_u32 v{WRS}, {GB + 96}, v5")
    a("s_lshl_b32 s23, s22, 7")
    a(f"s_add_u32 s23, s23, {GB}")
    a(f"v_add_u32 v{WRD}, s23, v5")
    a(f"v_mov_b32 v{VC0}, {f32(C0)}")
    a(f"v_mov_b32 v{VC1}, {f32(C1)}")
    a(f"v_lshlrev_b32 v{VLANE16}, 4, v2")
    a("s_lshl_b32 s23, s19, 2")
    a("s_add_u32 s49, s23, s45")
    a("s_add_u32 s50, s23, s46")
    a("s_mul_i32 s49, s49, 112")
    a("s_mul_i32 s50, s50, 112")
    a("s_mul_i32 s23, s20, 7")
    a("s_add_u32 s49, s49, s23")
    a("s_add_u32 s50, s50, s23")
    a("s_add_u32 s51, s49, 3")
    a("s_lshl_b32 s23, s22, 2")
    a("s_add_u32 s49, s49, s23")
    a("s_add_u32 s50, s50, s23")
    a("s_lshl_b32 s49, s49, 10")
    a("s_lshl_b32 s50, s50, 10")
    a("s_lshl_b32 s51, s51, 10")

    def reads(n):
        st, s = divmod(n, 4)
        buf = st % 3
        f = FR + 24 * (n & 1)
        r = []

        def w(b, reg, badd):
            for sec in range(2):
                off = buf * 14336 + (16 * s + 4 * sec) * 224 + badd
                r.append((f"ds_read_b64_tr_b16 {vr(f + 8 + 4 * b + 2 * sec, 2)}, v{reg} offset:{off}", ("w", n, b)))
        r.append((f"ds_read_b128 {vr(f, 4)}, v{XRD + s} offset:{XB + buf * 16384}", ("x", n, 0)))
        w(0, WRD, 0)
        r.append((f"ds_read_b128 {vr(f + 4, 4)}, v{XRD + 4 + s} offset:{XB + buf * 16384}", ("x", n, 1)))
        w(1, WRD, 32)
        w(2, WRD, 64)
        w(3, WRS, 0)
        return r

    MF = [(0, 0), (0, 1), (1, 0), (1, 1), (2, 0), (2, 1), (3, 0)]

    a.wait(vm=[("dma", 0)])
    a("s_barrier")
    stamp(a)
    for ins, tag in reads(0):
        a.lds(ins, tag)
    pend_dma = []
    for n in range(32):
        st, s = divmod(n, 4)
        f = FR + 24 * (n & 1)
        nxt = reads(n + 1) if n + 1 < 32 else []
        first_slot = 0
        for i, (b, x) in enumerate(MF):
            a.wait(lg=[("w", n, b), ("x", n, x)])
            acc = vr(ACC + 16 * i, 16)
            c = "0" if n == 0 else acc
            a(f"v_mfma_f32_32x32x16_bf16 {acc}, {vr(f + 8 + 4 * b, 4)}, {vr(f + 4 * x, 4)}, {c}")
            if s == 3 and i == 0 and st < 7:
                assert not pend_dma
                a.wait(lg=[t for t in a.lg], vm=[("dma", st + 1)])
                a("s_barrier")
                if st + 3 < 8:
                    pend_dma = [(op, st + 3) for op in dma_ops(st + 3)]
            if i < 5:
                for ins, tag in nxt[2 * i: 2 * i + 2]:
                    a.lds(ins, tag)
            if pend_dma and i in (1, 3, 5):
                emit_dma(*pend_dma.pop(0))
    stamp(a)
    a("s_nop 7")
    for i, (b, x) in enumerate(MF):
        g = ACC + 16 * i
        u = g + 8
        for e in range(8):
            a(f"v_mul_f32 v{TMP + e}, v{g + e}, v{g + e}")
        for e in range(8):
            a(f"v_fma_f32 v{TMP + e}, v{TMP + e}, v{VC1}, v{VC0}")
        for e in range(8):
            a(f"v_mul_f32 v{TMP + e}, v{TMP + e}, v{g + e}")
        for e in range(8):
            a(f"v_exp_f32 v{TMP + e}, v{TMP + e}")
        for e in range(8):
            a(f"v_mul_f32 v{g + e}, v{g + e}, v{u + e}")
        for e in range(8):
            a(f"v_add_f32 v{TMP + e}, 1.0, v{TMP + e}")
        for e in range(8):
            a(f"v_rcp_f32 v{TMP + e}, v{TMP + e}")
        a("s_nop 0")
        for e in range(8):
            a(f"v_mul_f32 v{g + e}, v{g + e}, v{TMP + e}")
        for e in range(4):
            a(f"v_cvt_pk_bf16_f32 v{u + e}, v{g + 2 * e}, v{g + 2 * e + 1}")
        if b < 3:
            so, off = (49 if x == 0 else 50), 1024 * b
        else:
            so, off = 51, 0
        a(f"buffer_store_dwordx4 {vr(u, 4)}, v{VLANE16}, s[32:35], s{so} offen offset:{off}{HST}")
    stamp(a)
    if DIAG:
        a("s_waitcnt vmcnt(0)")
    stamp(a)
    stamp_flush(a, 0, "K1_NOSTAMP")
    a.label("K1_END")
    a("s_endpgm")
    kernel_desc(a, name, 208, 208)


K2_LDS = 131072
ACC2 = 16
WF = 80
HR = 96
DEPTH = 14
WRA = 208
WOF2 = 210
VL16 = 212
VRED = 213
VOUT = 214


def k2(a):
    name = "k2_kernel"
    kernel_begin(a, name)
    a.nstamp = 0
    a.lg = []
    a.vm = []
    stamp(a)
    a("s_cmp_ge_u32 s2, 256")
    a("s_cbranch_scc1 K2_END")
    load_args(a)
    a("v_lshrrev_b32 v1, 6, v0")
    a("v_and_b32 v2, 63, v0")
    a("v_readfirstlane_b32 s18, v1")
    a("s_and_b32 s21, s2, 7")
    a("s_lshr_b32 s22, s2, 3")
    a("s_and_b32 s20, s22, 7")
    a("s_lshr_b32 s23, s22, 3")
    a("s_lshl_b32 s19, s21, 2")
    a("s_add_u32 s19, s19, s23")
    a(f"v_lshlrev_b32 v{VL16}, 4, v2")
    a("v_lshrrev_b32 v3, 3, v2")
    a("v_and_b32 v4, 7, v2")
    a("v_bfe_u32 v5, v2, 4, 1")
    a("v_lshlrev_b32 v5, 2, v5")
    a("v_xor_b32 v4, v4, v5")
    a("v_lshlrev_b32 v4, 4, v4")
    a(f"v_lshl_add_u32 v{WOF2}, v3, 10, v4")
    a(f"v_add_u32 v{WOF2 + 1}, {8192 - 1024}, v{WOF2}")
    a("s_waitcnt lgkmcnt(0)")
    a.srd(24, 10, 1835008)
    a.srd(28, 16, 2048 * 1792 * 2)
    a.srd(32, 12, 2097152)
    a(f"s_mul_i32 s41, s18, {448 * 1024}")
    a("s_lshl_b32 s23, s20, 7")
    a("s_add_u32 s41, s41, s23")
    a(f"s_mul_i32 s42, s19, {2 * 112 * 1024}")
    a(f"s_mul_i32 s23, s18, {28 * 1024}")
    a("s_add_u32 s42, s42, s23")
    a(f"s_add_u32 s43, s42, {112 * 1024}")
    a("s_lshl_b32 s44, s18, 15")

    def issue(ks):
        slot = ks % 16
        h = HR + 8 * (ks % DEPTH)
        a(f"s_add_u32 m0, s44, {slot * 2048}")
        a.vmem(f"buffer_load_dwordx4 {vr(h, 4)}, v{VL16}, s[28:31], s42 offen", ("g", ks))
        a.vmem(f"buffer_load_dwordx4 v{WOF2}, s[24:27], s41 offen lds", ("g", ks))
        a.vmem(f"buffer_load_dwordx4 {vr(h + 4, 4)}, v{VL16}, s[28:31], s43 offen", ("g", ks))
        a.vmem(f"buffer_load_dwordx4 v{WOF2 + 1}, s[24:27], s41 offen offset:1024 lds", ("g", ks))
        a("s_add_u32 s41, s41, 16384")
        a("s_add_u32 s42, s42, 1024")
        a("s_add_u32 s43, s43, 1024")

    for ks in range(DEPTH):
        issue(ks)
    a("v_lshrrev_b32 v3, 5, v2")
    a("v_bfe_u32 v4, v2, 2, 2")
    a("v_lshl_add_u32 v3, v3, 2, v4")
    a("v_lshlrev_b32 v3, 7, v3")
    a("v_bfe_u32 v5, v2, 3, 1")
    a("v_lshlrev_b32 v5, 6, v5")
    a("v_bfe_u32 v6, v2, 4, 1")
    a("v_lshl_add_u32 v5, v6, 5, v5")
    a("v_and_b32 v6, 3, v2")
    a("v_lshl_add_u32 v5, v6, 3, v5")
    a("v_add_u32 v3, v3, v5")
    a(f"v_add_u32 v{WRA}, s44, v3")
    a(f"v_xor_b32 v{WRA + 1}, 64, v{WRA}")

    def reads(ks):
        slot = ks % 16
        f = WF + 8 * (ks & 1)
        r = []
        for cb in range(2):
            for sec in range(2):
                r.append((f"ds_read_b64_tr_b16 {vr(f + 4 * cb + 2 * sec, 2)}, v{WRA + cb} offset:{slot * 2048 + sec * 1024}", ("w", ks, cb)))
        return r

    a.wait(vm=[("g", 0)])
    stamp(a)
    for ins, tag in reads(0):
        a.lds(ins, tag)
    for ks in range(28):
        f = WF + 8 * (ks & 1)
        h = HR + 8 * (ks % DEPTH)
        if ks + 1 < 28:
            a.wait(vm=[("g", ks + 1)])
            for ins, tag in reads(ks + 1):
                a.lds(ins, tag)
        for cb in range(2):
            a.wait(lg=[("w", ks, cb)])
            for tb in range(2):
                acc = vr(ACC2 + 16 * (2 * tb + cb), 16)
                c = "0" if ks == 0 else acc
                a(f"v_mfma_f32_32x32x16_bf16 {acc}, {vr(f + 4 * cb, 4)}, {vr(h + 4 * tb, 4)}, {c}")
        if ks + DEPTH < 28:
            issue(ks + DEPTH)
    stamp(a)
    a("s_barrier")
    a("s_lshl_b32 s23, s18, 12")
    a(f"v_add_u32 v{VRED}, s23, v{VL16}")
    a("s_nop 7")
    a("s_nop 3")
    for t in range(4):
        for q in range(4):
            a(f"ds_write_b128 v{VRED}, {vr(ACC2 + 16 * t + 4 * q, 4)} offset:{t * 16384 + q * 1024}")
    a("s_lshl_b32 s23, s18, 14")
    a(f"v_add_u32 v{VRED}, s23, v{VL16}")
    a("s_waitcnt lgkmcnt(0)")
    a("s_barrier")
    R = HR
    for src in range(4):
        for q in range(4):
            a(f"ds_read_b128 {vr(R + 16 * src + 4 * q, 4)}, v{VRED} offset:{src * 4096 + q * 1024}")
    a("v_and_b32 v3, 31, v2")
    a("v_lshrrev_b32 v4, 5, v2")
    a("v_lshlrev_b32 v3, 10, v3")
    a(f"v_lshl_add_u32 v{VOUT}, v4, 4, v3")
    a("s_lshl_b32 s45, s19, 16")
    a("s_lshr_b32 s23, s18, 1")
    a("s_lshl_b32 s23, s23, 15")
    a("s_add_u32 s45, s45, s23")
    a("s_lshl_b32 s23, s20, 7")
    a("s_add_u32 s45, s45, s23")
    a("s_and_b32 s23, s18, 1")
    a("s_lshl_b32 s23, s23, 6")
    a("s_add_u32 s45, s45, s23")
    a("s_waitcnt lgkmcnt(0)")
    for e in range(16):
        a(f"v_add_f32 v{R + e}, v{R + e}, v{R + 16 + e}")
        a(f"v_add_f32 v{R + 32 + e}, v{R + 32 + e}, v{R + 48 + e}")
    for e in range(16):
        a(f"v_add_f32 v{R + e}, v{R + e}, v{R + 32 + e}")
    for e in range(8):
        a(f"v_cvt_pk_bf16_f32 v{R + 16 + e}, v{R + 2 * e}, v{R + 2 * e + 1}")
    a("s_nop 1")
    for pr in range(2):
        b = R + 16 + 4 * pr
        a(f"v_permlane32_swap_b32 v{b}, v{b + 2}")
        a(f"v_permlane32_swap_b32 v{b + 1}, v{b + 3}")
    for pr in range(2):
        b = R + 16 + 4 * pr
        a(f"buffer_store_dwordx4 {vr(b, 4)}, v{VOUT}, s[32:35], s45 offen offset:{32 * pr}")
    stamp(a)
    if DIAG:
        a("s_waitcnt vmcnt(0)")
    stamp(a)
    stamp_flush(a, 10, "K2_NOSTAMP")
    a.label("K2_END")
    a("s_endpgm")
    kernel_desc(a, name, 216, 216)


a = Asm()
a.raw(HEADER.rstrip())
a.raw(f"; @launch kernel=k1_kernel grid=(256,1,1) block=(256,1,1) lds={K1_LDS}")
a.raw(f"; @launch kernel=k2_kernel grid=(256,1,1) block=(256,1,1) lds={K2_LDS}")
a.raw('.amdgcn_target "amdgcn-amd-amdhsa--gfx950"')
k1(a)
k2(a)
open(OUT, "w").write(a.text())
for q in range(448):
    assert (q * 4682) >> 16 == q // 14
```

```python
import math
import sys
from asmlib import *

DIAG = "--diag" in sys.argv
OUT = [a for a in sys.argv[1:] if not a.startswith("--")][0]
HST = " sc1"
for o in sys.argv:
    if o.startswith("--hst="):
        HST = " " + o[6:].replace(",", " ")

C0 = -2.0 * math.sqrt(2.0 / math.pi) * math.log2(math.e)
C1 = C0 * 0.044715
NSTAMP_WORDS = 32
STAMP_S0 = 56


def stamp(a):
    if not DIAG:
        return
    s = STAMP_S0 + 4 * a.nstamp
    a(f"s_memrealtime s[{s}:{s + 1}]")
    a(f"s_memtime s[{s + 2}:{s + 3}]")
    a.nstamp += 1


def stamp_flush(a, first_word, lbl):
    if not DIAG:
        return
    a("s_waitcnt lgkmcnt(0)")
    a("s_cmp_lg_u32 s18, 0")
    a(f"s_cbranch_scc1 {lbl}")
    a(f"s_mul_i32 s40, s2, {NSTAMP_WORDS * 4}")
    a(f"s_add_u32 s40, s40, {STAMP_OFF + first_word * 4}")
    a("v_mov_b32 v1, 0")
    a.srd(36, 16, WS_BYTES)
    for i in range(a.nstamp):
        s = STAMP_S0 + 4 * i
        a(f"v_mov_b32 v2, s{s}")
        a(f"v_mov_b32 v3, s{s + 2}")
        a(f"buffer_store_dwordx2 v[2:3], v1, s[36:39], s40 offen offset:{8 * i}")
        a("s_nop 1")
    a.label(lbl)


def load_args(a):
    a("s_load_dwordx8 s[4:11], s[0:1], 0")
    a("s_load_dwordx4 s[12:15], s[0:1], 32")
    a("s_load_dwordx2 s[16:17], s[0:1], 48")


XB = 0
GB = 49152
UB = 92288
K1_LDS = UB + 3 * 14336
ACC = 16
FR = 128
XRD = 176
WRD = 184
WRS = 185
XOFF = 186
WOFF = 190
VC0 = 197
VC1 = 198
VLANE16 = 199
TMP = 200


def k1(a):
    name = "standalone__glu_gated_geglu__prompt_kernel"
    kernel_begin(a, name)
    a.nstamp = 0
    stamp(a)
    a("s_cmp_ge_u32 s2, 256")
    a("s_cbranch_scc1 K1_END")
    load_args(a)
    a("v_lshrrev_b32 v1, 6, v0")
    a("v_and_b32 v2, 63, v0")
    a("v_readfirstlane_b32 s18, v1")
    a("s_and_b32 s21, s2, 7")
    a("s_lshr_b32 s22, s2, 3")
    a("s_and_b32 s19, s21, 1")
    a("s_lshl_b32 s19, s19, 3")
    a("s_and_b32 s23, s22, 7")
    a("s_add_u32 s19, s19, s23")
    a("s_lshr_b32 s20, s21, 1")
    a("s_lshl_b32 s20, s20, 2")
    a("s_lshr_b32 s23, s22, 3")
    a("s_add_u32 s20, s20, s23")
    a("s_and_b32 s21, s18, 1")
    a("s_lshr_b32 s22, s18, 1")
    a("v_lshrrev_b32 v3, 3, v2")
    a("v_and_b32 v4, 7, v2")
    a("v_lshrrev_b32 v5, 4, v2")
    for j in range(4):
        a(f"v_add_u32 v6, {4 * (j & 1)}, v5")
        a("v_xor_b32 v6, v6, v4")
        a("v_lshlrev_b32 v6, 4, v6")
        a(f"v_lshl_add_u32 v6, v3, 10, v6")
        a(f"v_add_u32 v{XOFF + j}, {j * (8192 - 1024)}, v6")
    a("s_movk_i32 s23, 4682")
    a("s_movk_i32 s40, 3584")
    for j in range(7):
        a(f"v_add_u32 v6, {64 * j}, v2")
        a("v_mul_lo_u32 v7, v6, s23")
        a("v_lshrrev_b32 v7, 16, v7")
        a("v_mul_u32_u24 v8, 14, v7")
        a("v_sub_u32 v8, v6, v8")
        a("v_lshlrev_b32 v8, 4, v8")
        a("v_mad_u32_u24 v8, v7, s40, v8")
        a(f"v_subrev_u32 v{WOFF + j}, {1024 * (j % 4)}, v8")
    a("s_waitcnt lgkmcnt(0)")
    a.srd(24, 4, 2097152)
    a("s_cmp_eq_u32 s22, 0")
    a("s_cselect_b32 s28, s6, s8")
    a("s_cselect_b32 s29, s7, s9")
    a("s_and_b32 s29, s29, 0xffff")
    a("s_mov_b32 s30, 1835008")
    a("s_mov_b32 s31, 0x20000")
    a.srd(32, 16, 2048 * 1792 * 2)
    a("s_lshl_b32 s41, s19, 17")
    a("s_lshl_b32 s23, s18, 15")
    a("s_add_u32 s41, s41, s23")
    a(f"s_mul_i32 s42, s21, {32 * 3584}")
    a("s_mul_i32 s23, s20, 224")
    a("s_add_u32 s42, s42, s23")
    a("s_lshl_b32 s43, s18, 12")
    a(f"s_mul_i32 s44, s22, {UB - GB}")
    a("s_mul_i32 s23, s21, 7168")
    a("s_add_u32 s44, s44, s23")
    a(f"s_add_u32 s44, s44, {GB}")

    def dma_ops(st):
        buf = st % 3
        ops = []
        for j in range(4):
            pre = [f"s_add_u32 m0, s43, {XB + buf * 16384}"] if j == 0 else []
            post = ["s_add_u32 s41, s41, 128"] if j == 3 else []
            ops.append((pre, f"buffer_load_dwordx4 v{XOFF + j}, s[24:27], s41 offen offset:{1024 * j} lds", post))
        for j in range(7):
            pre = [f"s_add_u32 m0, s44, {buf * 14336 + (4096 if j == 4 else 0)}"] if j in (0, 4) else []
            post = [f"s_add_u32 s42, s42, {64 * 3584}"] if j == 6 else []
            ops.append((pre, f"buffer_load_dwordx4 v{WOFF + j}, s[28:31], s42 offen offset:{1024 * (j % 4)} lds", post))
        return ops

    def emit_dma(op, st):
        pre, ins, post = op
        for p in pre:
            a(p)
            a("s_nop 0")
        a.vmem(ins, ("dma", st))
        for p in post:
            a(p)

    for st in range(3):
        for op in dma_ops(st):
            emit_dma(op, st)

    a("v_and_b32 v3, 31, v2")
    a("v_lshrrev_b32 v4, 5, v2")
    a("v_bfe_u32 v5, v3, 1, 3")
    a("v_xor_b32 v5, v5, v4")
    a("v_lshlrev_b32 v5, 4, v5")
    a("v_lshl_add_u32 v5, v3, 7, v5")
    a("s_lshl_b32 s23, s21, 1")
    a("s_add_u32 s45, s23, s22")
    a("s_xor_b32 s46, s45, 1")
    a("s_lshl_b32 s47, s45, 12")
    a("s_lshl_b32 s48, s46, 12")
    for s in range(4):
        a(f"v_xor_b32 v6, {32 * s}, v5")
        a(f"v_add_u32 v{XRD + s}, s47, v6")
        a(f"v_add_u32 v{XRD + 4 + s}, s48, v6")
    a("v_bfe_u32 v3, v2, 4, 1")
    a("v_bfe_u32 v5, v2, 2, 2")
    a("v_and_b32 v6, 3, v2")
    a("v_lshl_add_u32 v5, v4, 3, v5")
    a("v_mul_u32_u24 v5, 224, v5")
    a("v_lshl_add_u32 v5, v6, 3, v5")
    a(f"v_mul_u32_u24 v3, {UB - GB}, v3")
    a("v_add_u32 v5, v5, v3")
    a(f"v_add_u32 v{WRS}, {GB + 96}, v5")
    a("s_lshl_b32 s23, s22, 7")
    a(f"s_add_u32 s23, s23, {GB}")
    a(f"v_add_u32 v{WRD}, s23, v5")
    a(f"v_mov_b32 v{VC0}, {f32(C0)}")
    a(f"v_mov_b32 v{VC1}, {f32(C1)}")
    a(f"v_lshlrev_b32 v{VLANE16}, 4, v2")
    a("s_lshl_b32 s23, s19, 2")
    a("s_add_u32 s49, s23, s45")
    a("s_add_u32 s50, s23, s46")
    a("s_mul_i32 s49, s49, 112")
    a("s_mul_i32 s50, s50, 112")
    a("s_mul_i32 s23, s20, 7")
    a("s_add_u32 s49, s49, s23")
    a("s_add_u32 s50, s50, s23")
    a("s_add_u32 s51, s49, 3")
    a("s_lshl_b32 s23, s22, 2")
    a("s_add_u32 s49, s49, s23")
    a("s_add_u32 s50, s50, s23")
    a("s_lshl_b32 s49, s49, 10")
    a("s_lshl_b32 s50, s50, 10")
    a("s_lshl_b32 s51, s51, 10")

    def reads(n):
        st, s = divmod(n, 4)
        buf = st % 3
        f = FR + 24 * (n & 1)
        r = []

        def w(b, reg, badd):
            for sec in range(2):
                off = buf * 14336 + (16 * s + 4 * sec) * 224 + badd
                r.append((f"ds_read_b64_tr_b16 {vr(f + 8 + 4 * b + 2 * sec, 2)}, v{reg} offset:{off}", ("w", n, b)))
        r.append((f"ds_read_b128 {vr(f, 4)}, v{XRD + s} offset:{XB + buf * 16384}", ("x", n, 0)))
        w(0, WRD, 0)
        r.append((f"ds_read_b128 {vr(f + 4, 4)}, v{XRD + 4 + s} offset:{XB + buf * 16384}", ("x", n, 1)))
        w(1, WRD, 32)
        w(2, WRD, 64)
        w(3, WRS, 0)
        return r

    MF = [(0, 0), (0, 1), (1, 0), (1, 1), (2, 0), (2, 1), (3, 0)]

    a.wait(vm=[("dma", 0)])
    a("s_barrier")
    stamp(a)
    for ins, tag in reads(0):
        a.lds(ins, tag)
    pend_dma = []
    for n in range(32):
        st, s = divmod(n, 4)
        f = FR + 24 * (n & 1)
        nxt = reads(n + 1) if n + 1 < 32 else []
        first_slot = 0
        for i, (b, x) in enumerate(MF):
            a.wait(lg=[("w", n, b), ("x", n, x)])
            acc = vr(ACC + 16 * i, 16)
            c = "0" if n == 0 else acc
            a(f"v_mfma_f32_32x32x16_bf16 {acc}, {vr(f + 8 + 4 * b, 4)}, {vr(f + 4 * x, 4)}, {c}")
            if s == 3 and i == 0 and st < 7:
                assert not pend_dma
                a.wait(lg=[t for t in a.lg], vm=[("dma", st + 1)])
                a("s_barrier")
                if st + 3 < 8:
                    pend_dma = [(op, st + 3) for op in dma_ops(st + 3)]
            if i < 5:
                for ins, tag in nxt[2 * i: 2 * i + 2]:
                    a.lds(ins, tag)
            if pend_dma and i in (1, 3, 5):
                emit_dma(*pend_dma.pop(0))
    stamp(a)
    p2_prefetch(a)
    a("s_nop 7")
    for i, (b, x) in enumerate(MF):
        g = ACC + 16 * i
        u = g + 8
        for e in range(8):
            a(f"v_mul_f32 v{TMP + e}, v{g + e}, v{g + e}")
        for e in range(8):
            a(f"v_fma_f32 v{TMP + e}, v{TMP + e}, v{VC1}, v{VC0}")
        for e in range(8):
            a(f"v_mul_f32 v{TMP + e}, v{TMP + e}, v{g + e}")
        for e in range(8):
            a(f"v_exp_f32 v{TMP + e}, v{TMP + e}")
        for e in range(8):
            a(f"v_mul_f32 v{g + e}, v{g + e}, v{u + e}")
        for e in range(8):
            a(f"v_add_f32 v{TMP + e}, 1.0, v{TMP + e}")
        for e in range(8):
            a(f"v_rcp_f32 v{TMP + e}, v{TMP + e}")
        a("s_nop 0")
        for e in range(8):
            a(f"v_mul_f32 v{g + e}, v{g + e}, v{TMP + e}")
        for e in range(4):
            a(f"v_cvt_pk_bf16_f32 v{u + e}, v{g + 2 * e}, v{g + 2 * e + 1}")
        if b < 3:
            so, off = (49 if x == 0 else 50), 1024 * b
        else:
            so, off = 51, 0
        a(f"buffer_store_dwordx4 {vr(u, 4)}, v{VLANE16}, s[32:35], s{so} offen offset:{off}{HST}")
    stamp(a)
    a.wait_all(vm=True)
    a("s_barrier")
    stamp(a)
    a.srd(36, 14, 256)
    a("s_lshr_b32 s23, s20, 2")
    a("s_lshl_b32 s40, s19, 2")
    a("s_add_u32 s40, s40, s23")
    a("s_lshl_b32 s40, s40, 2")
    a("s_cmp_lg_u32 s18, 0")
    a("s_cbranch_scc1 NOSIG")
    a("v_mov_b32 v3, 0")
    a("v_mov_b32 v4, 1")
    a("s_mov_b64 exec, 1")
    a("buffer_atomic_add v4, v3, s[36:39], s40 offen sc1")
    a("s_mov_b64 exec, -1")
    a.label("NOSIG")
    k2(a)
    a.label("K1_END")
    a("s_endpgm")
    kernel_desc(a, name, 224, 224, 102)


K2_LDS = 131072
ACC2 = 16
WF = 80
HR = 96
DEPTH = 14
WRA = 208
WOF2 = 210
VL16 = 212
VRED = 213
VOUT = 214


def wd_issue(a, ks):
    slot = ks % 16
    a(f"s_add_u32 m0, s54, {slot * 2048}")
    a("s_nop 0")
    a.vmem(f"buffer_load_dwordx4 v{WOF2}, s[24:27], s41 offen lds", ("wd", ks))
    a.vmem(f"buffer_load_dwordx4 v{WOF2 + 1}, s[24:27], s41 offen offset:1024 lds", ("wd", ks))
    a("s_add_u32 s41, s41, 16384")


def p2_prefetch(a):
    a("s_and_b32 s21, s2, 7")
    a("s_lshr_b32 s22, s2, 3")
    a("s_and_b32 s53, s22, 7")
    a("s_lshr_b32 s23, s22, 3")
    a("s_and_b32 s52, s21, 1")
    a("s_lshl_b32 s52, s52, 4")
    a("s_lshr_b32 s21, s21, 1")
    a("s_lshl_b32 s21, s21, 2")
    a("s_add_u32 s52, s52, s21")
    a("s_add_u32 s52, s52, s23")
    a(f"v_lshlrev_b32 v{VL16}, 4, v2")
    a("v_lshrrev_b32 v3, 3, v2")
    a("v_and_b32 v4, 7, v2")
    a("v_bfe_u32 v5, v2, 4, 1")
    a("v_lshlrev_b32 v5, 2, v5")
    a("v_xor_b32 v4, v4, v5")
    a("v_lshlrev_b32 v4, 4, v4")
    a(f"v_lshl_add_u32 v{WOF2}, v3, 10, v4")
    a(f"v_add_u32 v{WOF2 + 1}, {8192 - 1024}, v{WOF2}")
    a.srd(24, 10, 1835008)
    a(f"s_mul_i32 s41, s18, {448 * 1024}")
    a("s_lshl_b32 s23, s53, 7")
    a("s_add_u32 s41, s41, s23")
    a("s_lshl_b32 s54, s18, 15")
    a("s_barrier")
    for ks in range(16):
        wd_issue(a, ks)


def k2(a):
    a.srd(28, 16, 2048 * 1792 * 2)
    a.srd(32, 12, 2097152)
    a("s_mov_b32 s19, s52")
    a("s_mov_b32 s20, s53")
    a("s_mov_b32 s44, s54")
    a(f"s_mul_i32 s42, s19, {2 * 112 * 1024}")
    a(f"s_mul_i32 s23, s18, {28 * 1024}")
    a("s_add_u32 s42, s42, s23")
    a(f"s_add_u32 s43, s42, {112 * 1024}")
    a("s_lshr_b32 s40, s19, 1")
    a("s_lshl_b32 s40, s40, 2")
    a("s_add_u32 s40, s40, s18")
    a("s_lshl_b32 s40, s40, 2")
    a("v_mov_b32 v3, 0")
    a("s_mov_b32 s55, 0")
    a.label("POLL")
    a("buffer_load_dword v4, v3, s[36:39], s40 offen sc1")
    a("s_add_u32 s55, s55, 1")
    a("s_cmp_gt_u32 s55, 200000")
    a("s_cbranch_scc1 POLL_DONE")
    a("s_waitcnt vmcnt(0)")
    a("v_readfirstlane_b32 s23, v4")
    a("s_cmp_lt_u32 s23, 4")
    a("s_cbranch_scc1 POLL")
    a.label("POLL_DONE")
    stamp(a)

    def issue(ks):
        h = HR + 8 * (ks % DEPTH)
        a.vmem(f"buffer_load_dwordx4 {vr(h, 4)}, v{VL16}, s[28:31], s42 offen sc1", ("g", ks))
        a.vmem(f"buffer_load_dwordx4 {vr(h + 4, 4)}, v{VL16}, s[28:31], s43 offen sc1", ("g", ks))
        a("s_add_u32 s42, s42, 1024")
        a("s_add_u32 s43, s43, 1024")

    for ks in range(DEPTH):
        issue(ks)
    a("v_lshrrev_b32 v3, 5, v2")
    a("v_bfe_u32 v4, v2, 2, 2")
    a("v_lshl_add_u32 v3, v3, 2, v4")
    a("v_lshlrev_b32 v3, 7, v3")
    a("v_bfe_u32 v5, v2, 3, 1")
    a("v_lshlrev_b32 v5, 6, v5")
    a("v_bfe_u32 v6, v2, 4, 1")
    a("v_lshl_add_u32 v5, v6, 5, v5")
    a("v_and_b32 v6, 3, v2")
    a("v_lshl_add_u32 v5, v6, 3, v5")
    a("v_add_u32 v3, v3, v5")
    a(f"v_add_u32 v{WRA}, s44, v3")
    a(f"v_xor_b32 v{WRA + 1}, 64, v{WRA}")

    def reads(ks):
        slot = ks % 16
        f = WF + 8 * (ks & 1)
        r = []
        for cb in range(2):
            for sec in range(2):
                r.append((f"ds_read_b64_tr_b16 {vr(f + 4 * cb + 2 * sec, 2)}, v{WRA + cb} offset:{slot * 2048 + sec * 1024}", ("w", ks, cb)))
        return r

    a.wait(vm=[("g", 0)])
    stamp(a)
    for ins, tag in reads(0):
        a.lds(ins, tag)
    for ks in range(28):
        f = WF + 8 * (ks & 1)
        h = HR + 8 * (ks % DEPTH)
        if ks + 1 < 28:
            a.wait(vm=[("wd", ks + 1)])
            for ins, tag in reads(ks + 1):
                a.lds(ins, tag)
        for cb in range(2):
            a.wait(lg=[("w", ks, cb)], vm=[("g", ks)])
            for tb in range(2):
                acc = vr(ACC2 + 16 * (2 * tb + cb), 16)
                c = "0" if ks == 0 else acc
                a(f"v_mfma_f32_32x32x16_bf16 {acc}, {vr(f + 4 * cb, 4)}, {vr(h + 4 * tb, 4)}, {c}")
        if ks + DEPTH < 28:
            issue(ks + DEPTH)
        if ks + 16 < 28:
            wd_issue(a, ks + 16)
    stamp(a)
    a("s_barrier")
    a("s_lshl_b32 s23, s18, 12")
    a(f"v_add_u32 v{VRED}, s23, v{VL16}")
    a("s_nop 7")
    a("s_nop 3")
    for t in range(4):
        for q in range(4):
            a(f"ds_write_b128 v{VRED}, {vr(ACC2 + 16 * t + 4 * q, 4)} offset:{t * 16384 + q * 1024}")
    a("s_lshl_b32 s23, s18, 14")
    a(f"v_add_u32 v{VRED}, s23, v{VL16}")
    a("s_waitcnt lgkmcnt(0)")
    a("s_barrier")
    R = HR
    for src in range(4):
        for q in range(4):
            a(f"ds_read_b128 {vr(R + 16 * src + 4 * q, 4)}, v{VRED} offset:{src * 4096 + q * 1024}")
    a("v_and_b32 v3, 31, v2")
    a("v_lshrrev_b32 v4, 5, v2")
    a("v_lshlrev_b32 v3, 10, v3")
    a(f"v_lshl_add_u32 v{VOUT}, v4, 4, v3")
    a("s_lshl_b32 s45, s19, 16")
    a("s_lshr_b32 s23, s18, 1")
    a("s_lshl_b32 s23, s23, 15")
    a("s_add_u32 s45, s45, s23")
    a("s_lshl_b32 s23, s20, 7")
    a("s_add_u32 s45, s45, s23")
    a("s_and_b32 s23, s18, 1")
    a("s_lshl_b32 s23, s23, 6")
    a("s_add_u32 s45, s45, s23")
    a("s_waitcnt lgkmcnt(0)")
    for e in range(16):
        a(f"v_add_f32 v{R + e}, v{R + e}, v{R + 16 + e}")
        a(f"v_add_f32 v{R + 32 + e}, v{R + 32 + e}, v{R + 48 + e}")
    for e in range(16):
        a(f"v_add_f32 v{R + e}, v{R + e}, v{R + 32 + e}")
    for e in range(8):
        a(f"v_cvt_pk_bf16_f32 v{R + 16 + e}, v{R + 2 * e}, v{R + 2 * e + 1}")
    a("s_nop 1")
    for pr in range(2):
        b = R + 16 + 4 * pr
        a(f"v_permlane32_swap_b32 v{b}, v{b + 2}")
        a(f"v_permlane32_swap_b32 v{b + 1}, v{b + 3}")
    for pr in range(2):
        b = R + 16 + 4 * pr
        a(f"buffer_store_dwordx4 {vr(b, 4)}, v{VOUT}, s[32:35], s45 offen offset:{32 * pr}")
    stamp(a)
    if DIAG:
        a("s_waitcnt vmcnt(0)")
    stamp(a)
    stamp_flush(a, 0, "K2_NOSTAMP")


a = Asm()
a.raw(HEADER.rstrip())
a.raw(f"; @launch grid=(256,1,1) block=(256,1,1) lds={K1_LDS}")
a.raw('.amdgcn_target "amdgcn-amd-amdhsa--gfx950"')
k1(a)
open(OUT, "w").write(a.text())
for q in range(448):
    assert (q * 4682) >> 16 == q // 14
```

```python
import math
import sys
from asmlib import *

opts = {"diag": 0, "pk": 1, "nlev": 2, "wdlag": 4, "win": 7, "pollpos": 1}
OUT = None
for o in sys.argv[1:]:
    if "=" in o:
        k, v = o.split("=")
        assert k in opts, k
        opts[k] = int(v)
    else:
        OUT = o
DIAG, PK, NLEV = opts["diag"], opts["pk"], opts["nlev"]

C0 = -2.0 * math.sqrt(2.0 / math.pi) * math.log2(math.e)
C1 = C0 * 0.044715
NSTAMP_WORDS = 32
STAMP_S0 = 60
H_BYTES = 2048 * 1792 * 2
FLAG_OFF = H_BYTES
WS_USED = FLAG_OFF + 128 * 128
SPIN_MAX = 200000

WAVE_LDS = 28672
WB = 4 * WAVE_LDS
LDS_BYTES = WB + 3 * 16384

ACC = 16
FR = 144
XRD, WRD, XOFF, WOFF = 192, 196, 200, 204
VL16 = 209
VC0, VC1 = 210, 212
TMP = 214
VFLAG, VFOFF, VZERO, VLEV = 230, 231, 232, 233
WDOFF, WDRD = 234, 236
VRED, VOUT = 238, 239
VEP = 240
HR = 16
ACC2 = 144
POLL = f"buffer_load_dword v{VFLAG}, v{VFOFF}, s[32:35], s56 offen sc1"
NAME = "standalone__glu_gated_geglu__prompt_kernel"


def stamp(a, idx):
    if not DIAG:
        return
    s = STAMP_S0 + 4 * idx
    a(f"s_memrealtime s[{s}:{s + 1}]")
    a(f"s_memtime s[{s + 2}:{s + 3}]")


NSTAMPS = 10


def stamp_flush(a):
    if not DIAG:
        return
    a("s_waitcnt lgkmcnt(0)")
    a("s_cmp_lg_u32 s18, 0")
    a("s_cbranch_scc1 END")
    a(f"s_mul_i32 s23, s2, {NSTAMP_WORDS * 4}")
    a(f"s_add_u32 s23, s23, {STAMP_OFF}")
    a("v_mov_b32 v1, 0")
    a(f"s_mov_b32 s34, {WS_BYTES}")
    for i in range(NSTAMPS):
        s = STAMP_S0 + 4 * i
        a(f"v_mov_b32 v2, s{s}")
        a(f"v_mov_b32 v3, s{s + 2}")
        a(f"buffer_store_dwordx2 v[2:3], v1, s[32:35], s23 offen offset:{8 * i}")
        a("s_nop 1")


class WdPipe:
    def __init__(self, a, slots):
        self.a = a
        self.free = list(slots)
        self.issued = 0
        self.read = 0
        self.slot_of = {}
        self.recycle = []

    def add_slots(self, slots):
        self.free += list(slots)

    def reclaim(self):
        keep = []
        for ks in self.recycle:
            if ("wdr", ks) in self.a.lg:
                keep.append(ks)
            else:
                self.free.append(self.slot_of[ks])
        self.recycle = keep

    def issue(self, force=False):
        a = self.a
        if self.issued >= 28:
            return False
        self.reclaim()
        if not self.free and force and self.recycle:
            a.wait(lg=[("wdr", self.recycle[0])])
            self.reclaim()
        if not self.free:
            return False
        ks = self.issued
        slot = self.free.pop(0)
        self.slot_of[ks] = slot
        a(f"s_add_u32 m0, s50, {slot}")
        a("s_nop 0")
        a.vmem(f"buffer_load_dwordx4 v{WDOFF}, s[40:43], s52 offen lds", ("wd", ks))
        a.vmem(f"buffer_load_dwordx4 v{WDOFF + 1}, s[40:43], s52 offen offset:1024 lds", ("wd", ks))
        a("s_add_u32 s52, s52, 16384")
        self.issued += 1
        return True

    def read_ops(self):
        ks = self.read
        slot = self.slot_of[ks]
        ops = []
        for cb in range(2):
            for sec in range(2):
                ops.append((f"ds_read_b64_tr_b16 {vr(8 * ks + 4 * cb + 2 * sec, 2, 'a')}, v{WDRD + cb} offset:{slot + sec * 1024}", ("wdr", ks)))
        self.read += 1
        return ks, ops

    def do_read(self):
        if self.read >= self.issued:
            return False
        ks, ops = self.read_ops()
        self.a.wait(vm=[("wd", ks)])
        for ins, tag in ops:
            self.a.lds(ins, tag)
        self.recycle.append(ks)
        return True

    def tick(self, lag, force=False):
        self.issue(force)
        if self.issued - self.read > lag or (self.issued == 28 and self.read < 28):
            self.do_read()

    def finish(self, lag):
        while self.read < 28:
            if self.issued < 28 and self.issued - self.read <= lag and (self.free or self.recycle):
                self.issue(force=True)
            else:
                self.do_read()


def spin(a, lbl, load, cond_fail):
    a("s_mov_b32 s57, 0")
    a.label(lbl)
    a(load)
    a("s_add_u32 s57, s57, 1")
    a(f"s_cmp_gt_u32 s57, {SPIN_MAX}")
    a(f"s_cbranch_scc1 {lbl}_X")
    a("s_waitcnt vmcnt(0)")
    for c in cond_fail:
        a(c)
    a(f"s_cbranch_scc1 {lbl}")
    a.label(lbl + "_X")
    a("s_waitcnt vmcnt(0)")
    a.vm = []


def gelu_ops(i):
    g = ACC + 16 * i
    u = g + 8
    t = TMP + 8 * (i & 1)
    o = []
    if PK:
        for e in range(0, 8, 2):
            o.append(f"v_pk_mul_f32 {vr(t + e, 2)}, {vr(g + e, 2)}, {vr(g + e, 2)}")
        for e in range(0, 8, 2):
            o.append(f"v_pk_fma_f32 {vr(t + e, 2)}, {vr(t + e, 2)}, {vr(VC1, 2)}, {vr(VC0, 2)}")
        for e in range(0, 8, 2):
            o.append(f"v_pk_mul_f32 {vr(t + e, 2)}, {vr(t + e, 2)}, {vr(g + e, 2)}")
        for e in range(8):
            o.append(f"v_exp_f32 v{t + e}, v{t + e}")
        for e in range(0, 8, 2):
            o.append(f"v_pk_mul_f32 {vr(g + e, 2)}, {vr(g + e, 2)}, {vr(u + e, 2)}")
        for e in range(0, 8, 2):
            o.append(f"v_pk_add_f32 {vr(t + e, 2)}, {vr(t + e, 2)}, 1.0 op_sel_hi:[1,0]")
        for e in range(8):
            o.append(f"v_rcp_f32 v{t + e}, v{t + e}")
        o.append("s_nop 0")
        for e in range(0, 8, 2):
            o.append(f"v_pk_mul_f32 {vr(g + e, 2)}, {vr(g + e, 2)}, {vr(t + e, 2)}")
    else:
        for e in range(8):
            o.append(f"v_mul_f32 v{t + e}, v{g + e}, v{g + e}")
        for e in range(8):
            o.append(f"v_fma_f32 v{t + e}, v{t + e}, v{VC1}, v{VC0}")
        for e in range(8):
            o.append(f"v_mul_f32 v{t + e}, v{t + e}, v{g + e}")
        for e in range(8):
            o.append(f"v_exp_f32 v{t + e}, v{t + e}")
        for e in range(8):
            o.append(f"v_mul_f32 v{g + e}, v{g + e}, v{u + e}")
        for e in range(8):
            o.append(f"v_add_f32 v{t + e}, 1.0, v{t + e}")
        for e in range(8):
            o.append(f"v_rcp_f32 v{t + e}, v{t + e}")
        o.append("s_nop 0")
        for e in range(8):
            o.append(f"v_mul_f32 v{g + e}, v{g + e}, v{t + e}")
    for e in range(4):
        o.append(f"v_cvt_pk_bf16_f32 v{u + e}, v{g + 2 * e}, v{g + 2 * e + 1}")
    return o


def prologue(a):
    stamp(a, 0)
    a("s_cmp_ge_u32 s2, 256")
    a("s_cbranch_scc1 END")
    a("s_load_dwordx8 s[4:11], s[0:1], 0")
    a("s_load_dwordx4 s[12:15], s[0:1], 32")
    a("s_load_dwordx2 s[16:17], s[0:1], 48")
    a("v_lshrrev_b32 v1, 6, v0")
    a("v_and_b32 v2, 63, v0")
    a("v_readfirstlane_b32 s18, v1")
    a("s_and_b32 s3, s2, 7")
    a("s_lshr_b32 s58, s2, 3")
    a("s_and_b32 s19, s3, 1")
    a("s_lshl_b32 s19, s19, 2")
    a("s_lshr_b32 s20, s3, 1")
    a("s_add_u32 s21, s19, s20")
    a("s_lshl_b32 s21, s21, 2")
    a("s_lshr_b32 s23, s58, 3")
    a("s_add_u32 s21, s21, s23")
    a("s_and_b32 s22, s58, 7")
    a("s_and_b32 s23, s58, 3")
    a("s_add_u32 s19, s19, s23")
    a("s_mul_i32 s59, s20, 7")
    a("s_lshr_b32 s23, s58, 2")
    a("s_add_u32 s59, s59, s23")
    a("v_lshrrev_b32 v3, 3, v2")
    a("v_and_b32 v4, 7, v2")
    a("v_lshrrev_b32 v5, 4, v2")
    a(f"s_mul_i32 s50, s18, {WAVE_LDS}")


def p1_setup_dma(a):
    for j in range(4):
        a(f"v_add_u32 v6, {4 * (j & 1)}, v5")
        a("v_xor_b32 v6, v6, v4")
        a("v_lshlrev_b32 v6, 4, v6")
        a("v_lshl_add_u32 v6, v3, 10, v6")
        a(f"v_add_u32 v{XOFF + j}, {j * (8192 - 1024)}, v6")
    a("s_and_b32 s23, s18, 2")
    a("v_and_b32 v6, 1, v5")
    a("v_or_b32 v6, s23, v6")
    a("v_lshlrev_b32 v6, 1, v6")
    a("v_xor_b32 v6, v6, v4")
    a("v_lshlrev_b32 v6, 4, v6")
    a("v_mul_u32_u24 v7, 3584, v3")
    a(f"v_add_u32 v{WOFF}, v6, v7")
    a("s_lshl_b32 s48, s19, 18")
    a("s_lshl_b32 s23, s18, 16")
    a("s_add_u32 s48, s48, s23")
    a("s_add_u32 s53, s48, 32768")
    a("s_and_b32 s23, s18, 1")
    a(f"s_mul_i32 s49, s23, {8 * 3584}")
    a("s_lshl_b32 s54, s59, 7")
    a("s_add_u32 s49, s49, s54")
    a("s_lshl_b32 s51, s23, 10")
    a("s_lshr_b32 s23, s18, 1")
    a("s_lshl_b32 s23, s23, 13")
    a("s_add_u32 s51, s51, s23")
    a(f"s_add_u32 s51, s51, {WB}")
    a("s_waitcnt lgkmcnt(0)")
    a.srd(24, 4, 2097152)
    a("s_cmp_lt_u32 s18, 2")
    a("s_cselect_b32 s28, s6, s8")
    a("s_cselect_b32 s29, s7, s9")
    a("s_and_b32 s29, s29, 0xffff")
    a("s_mov_b32 s30, 1835008")
    a("s_mov_b32 s31, 0x20000")


def dma_ops(st):
    slot = st % 3
    ops = []
    for j in range(8):
        pre = [f"s_add_u32 m0, s50, {slot * 8192 + (j // 4) * 4096}"] if j % 4 == 0 else []
        so = 48 if j < 4 else 53
        post = [f"s_add_u32 s{so}, s{so}, 128"] if j % 4 == 3 else []
        ops.append((pre, f"buffer_load_dwordx4 v{XOFF + j % 4}, s[24:27], s{so} offen offset:{1024 * (j % 4)} lds", post))
    for s in range(4):
        ops.append(([f"s_add_u32 m0, s51, {slot * 16384 + s * 2048}"],
                    f"buffer_load_dwordx4 v{WOFF}, s[28:31], s49 offen lds",
                    [f"s_add_u32 s49, s49, {16 * 3584}"]))
    return ops


def emit_dma(a, op, st):
    pre, ins, post = op
    for p in pre:
        a(p)
        a("s_nop 0")
    a.vmem(ins, ("dma", st))
    for p in post:
        a(p)


def common_setup(a):
    a.srd(32, 16, WS_USED)
    a.srd(36, 14, 256)
    a.srd(40, 10, 1835008)
    a.srd(44, 12, 2097152)
    a(f"v_lshlrev_b32 v{VL16}, 4, v2")
    a(f"v_mov_b32 v{VZERO}, 0")
    a("v_and_b32 v6, 1, v5")
    a("v_lshlrev_b32 v6, 2, v6")
    a("v_xor_b32 v6, v6, v4")
    a("v_lshlrev_b32 v6, 4, v6")
    a(f"v_lshl_add_u32 v{WDOFF}, v3, 10, v6")
    a(f"v_add_u32 v{WDOFF + 1}, {8192 - 1024}, v{WDOFF}")
    a(f"s_mul_i32 s52, s18, {448 * 1024}")
    a("s_lshl_b32 s23, s22, 7")
    a("s_add_u32 s52, s52, s23")
    a("v_lshrrev_b32 v6, 5, v2")
    a("v_bfe_u32 v7, v2, 2, 2")
    a("v_lshl_add_u32 v6, v6, 2, v7")
    a("v_lshlrev_b32 v6, 7, v6")
    a("v_bfe_u32 v7, v2, 3, 1")
    a("v_lshl_add_u32 v6, v7, 6, v6")
    a("v_bfe_u32 v7, v2, 4, 1")
    a("v_lshl_add_u32 v6, v7, 5, v6")
    a("v_and_b32 v7, 3, v2")
    a("v_lshl_add_u32 v6, v7, 3, v6")
    a(f"v_add_u32 v{WDRD}, s50, v6")
    a(f"v_xor_b32 v{WDRD + 1}, 64, v{WDRD}")
    a("v_min_u32 v6, 6, v2")
    a(f"v_lshlrev_b32 v{VFOFF}, 2, v6")
    a("s_lshl_b32 s56, s21, 2")
    a("s_add_u32 s56, s56, s18")
    a("s_lshl_b32 s56, s56, 7")
    a(f"s_add_u32 s56, s56, {FLAG_OFF}")


def p1_setup_rest(a):
    a("v_and_b32 v6, 31, v2")
    a("v_lshrrev_b32 v7, 5, v2")
    a("v_bfe_u32 v8, v6, 1, 3")
    a("v_xor_b32 v8, v8, v7")
    a("v_lshlrev_b32 v8, 4, v8")
    a("v_lshl_add_u32 v8, v6, 7, v8")
    a("v_add_u32 v8, s50, v8")
    for s in range(4):
        a(f"v_xor_b32 v{XRD + s}, {32 * s}, v8")
    a("v_bfe_u32 v6, v2, 4, 1")
    a("v_bfe_u32 v8, v2, 2, 2")
    a("v_lshl_add_u32 v9, v7, 3, v8")
    a("v_lshlrev_b32 v9, 7, v9")
    a("v_lshl_add_u32 v9, v6, 13, v9")
    a("v_bfe_u32 v8, v2, 3, 1")
    a("v_lshl_add_u32 v8, v6, 1, v8")
    a("v_lshl_add_u32 v9, v8, 5, v9")
    a("v_and_b32 v8, 3, v2")
    a("v_lshl_add_u32 v9, v8, 3, v9")
    a(f"v_add_u32 v9, {WB}, v9")
    for b in range(4):
        a(f"v_xor_b32 v{WRD + b}, {32 * b}, v9")
    for e in range(2):
        a(f"v_mov_b32 v{VC0 + e}, {f32(C0)}")
        a(f"v_mov_b32 v{VC1 + e}, {f32(C1)}")
    a("s_lshl_b32 s55, s19, 2")
    a("s_add_u32 s55, s55, s18")
    a("s_lshl_b32 s55, s55, 2")
    a("s_add_u32 s55, s55, s20")
    a("s_lshl_b32 s55, s55, 7")
    a("s_lshr_b32 s23, s58, 2")
    a("s_lshl_b32 s23, s23, 2")
    a("s_add_u32 s55, s55, s23")
    a(f"s_add_u32 s55, s55, {FLAG_OFF}")


def reads(n):
    st, s = divmod(n, 4)
    slot = st % 3
    f = FR + 24 * (n & 1)
    r = []

    def w(b):
        for sec in range(2):
            off = slot * 16384 + (16 * s + 4 * sec) * 128
            r.append((f"ds_read_b64_tr_b16 {vr(f + 8 + 4 * b + 2 * sec, 2)}, v{WRD + b} offset:{off}", ("w", n, b)))

    r.append((f"ds_read_b128 {vr(f, 4)}, v{XRD + s} offset:{slot * 8192}", ("x", n, 0)))
    w(0)
    r.append((f"ds_read_b128 {vr(f + 4, 4)}, v{XRD + s} offset:{slot * 8192 + 4096}", ("x", n, 1)))
    w(1)
    w(2)
    w(3)
    return r


def phase1(a):
    p1_setup_dma(a)
    for op in dma_ops(0):
        emit_dma(a, op, 0)
    common_setup(a)
    for op in dma_ops(1):
        emit_dma(a, op, 1)
    p1_setup_rest(a)
    wd = WdPipe(a, [24576, 26624])
    a.wait(vm=[("dma", 0)])
    a("s_barrier")
    stamp(a, 1)
    for ins, tag in reads(0):
        a.lds(ins, tag)
    pend = [(op, 2) for op in dma_ops(2)]
    for n in range(32):
        st, s = divmod(n, 4)
        f = FR + 24 * (n & 1)
        nxt = reads(n + 1) if n + 1 < 32 else []
        for i in range(8):
            b, x = i >> 1, i & 1
            a.wait(lg=[("w", n, b), ("x", n, x)])
            acc = vr(ACC + 16 * i, 16)
            c = "0" if n == 0 else acc
            a(f"v_mfma_f32_32x32x16_bf16 {acc}, {vr(f + 8 + 4 * b, 4)}, {vr(f + 4 * x, 4)}, {c}")
            if s == 3 and i == 0:
                assert not pend
                if st < 7:
                    a.wait(lg=[t for t in a.lg if t[0] != "wdr"], vm=[("dma", st + 1)])
                    a("s_barrier")
                    if st + 3 < 8:
                        pend = [(op, st + 3) for op in dma_ops(st + 3)]
                if st == 4:
                    a.vmem(f"buffer_load_dword v{VEP}, v{VZERO}, s[36:39], 0 offen sc1", ("ep",))
            if s == 3 and i == 2 and st >= 5:
                wd.add_slots([(st % 3) * 8192 + 2048 * q for q in range(4)])
            if i < 5:
                for ins, tag in nxt[2 * i: 2 * i + 2]:
                    a.lds(ins, tag)
            want = (1, 3, 5, 7) if n < 3 else (2, 5, 7)
            if pend and i in want:
                emit_dma(a, *pend.pop(0))
            if n >= 23 and i in (3, 6):
                wd.tick(opts["wdlag"])
        if n == 15:
            stamp(a, 2)
    stamp(a, 3)
    print("wd issued/read at end of loop:", wd.issued, wd.read)
    a("s_lshl_b32 s53, s19, 2")
    a("s_add_u32 s53, s53, s18")
    a(f"s_mul_i32 s53, s53, {2 * 112 * 1024}")
    a("s_lshl_b32 s23, s59, 12")
    a("s_add_u32 s53, s53, s23")
    a(f"s_add_u32 s54, s53, {112 * 1024}")
    a.wait(vm=[("ep",)])
    a(f"v_readfirstlane_b32 s23, v{VEP}")
    a("s_cmp_eq_u32 s23, 1")
    a("s_cbranch_scc1 EP_OK")
    saved = list(a.vm)
    spin(a, "EP_SPIN", f"buffer_load_dword v{VEP}, v{VZERO}, s[36:39], 0 offen sc1",
         [f"v_readfirstlane_b32 s23, v{VEP}", "s_cmp_lg_u32 s23, 1"])
    a.vm = saved
    a.label("EP_OK")
    per_lev = 8 // NLEV
    pending_flag = None
    for i in range(8):
        ops = gelu_ops(i)
        ticks = (len(ops) // 3, 2 * len(ops) // 3)
        for k, o in enumerate(ops):
            a(o)
            if k in ticks:
                wd.tick(opts["wdlag"] + 2, True)
        b, x = i >> 1, i & 1
        if pending_flag is not None and (i - pending_flag[1] >= 2 or i == 7):
            emit_flag(a, pending_flag[0])
            pending_flag = None
        a.vmem(f"buffer_store_dwordx4 {vr(ACC + 16 * i + 8, 4)}, v{VL16}, s[32:35], s{53 + x} offen offset:{1024 * b} sc1", ("h", i // per_lev))
        if i % per_lev == per_lev - 1:
            if pending_flag is not None:
                emit_flag(a, pending_flag[0])
            pending_flag = (i // per_lev, i)
    stamp(a, 4)
    print("wd issued/read at end of gelu:", wd.issued, wd.read)
    wd.finish(8)
    a.vmem(POLL, ("poll", 1))
    emit_flag(a, pending_flag[0])
    stamp(a, 5)


def emit_flag(a, lev):
    a(f"v_mov_b32 v{VLEV}, {lev + 1}")
    a("s_mov_b64 exec, 1")
    a.wait(vm=[("h", lev)])
    a.vmem(f"buffer_store_dword v{VLEV}, v{VZERO}, s[32:35], s55 offen sc1", ("fl", lev))
    a("s_mov_b64 exec, -1")


def helper(a):
    a.label("HELPER")
    a.lg, a.vm = [], []
    a("s_waitcnt lgkmcnt(0)")
    common_setup(a)
    a("s_cmp_lg_u32 s2, 224")
    a("s_cbranch_scc1 H_NOCLR")
    for e in range(4):
        a(f"v_mov_b32 v{8 + e}, 0")
    a("s_lshl_b32 s23, s18, 12")
    a(f"s_add_u32 s23, s23, {FLAG_OFF}")
    for q in range(4):
        a(f"buffer_store_dwordx4 v[8:11], v{VL16}, s[32:35], s23 offen offset:{1024 * q} sc1")
    a("s_waitcnt vmcnt(0)")
    a("s_barrier")
    a("v_mov_b32 v8, 1")
    a("s_mov_b64 exec, 1")
    a(f"buffer_store_dword v8, v{VZERO}, s[36:39], 0 offen sc1")
    a("s_mov_b64 exec, -1")
    a.label("H_NOCLR")
    for i in range(1, 6):
        stamp(a, i)
    a("v_lshlrev_b32 v8, 10, v2")
    a("s_sub_u32 s23, s52, 512")
    wd = WdPipe(a, [2048 * q for q in range(14)])
    for q in range(7):
        wd.issue()
        wd.issue()
        a.vmem("buffer_load_dword v9, v8, s[40:43], s23 offen", ("pf",))
        a("s_add_u32 s23, s23, 65536")
    wd.finish(12)
    spin(a, "EP_SPIN2", f"buffer_load_dword v{VEP}, v{VZERO}, s[36:39], 0 offen sc1",
         [f"v_readfirstlane_b32 s23, v{VEP}", "s_cmp_lg_u32 s23, 1"])
    a("s_branch PHASE2")


def phase2(a):
    poll = POLL

    def fail(lev):
        return [f"v_cmp_gt_u32 vcc, {lev}, v{VFLAG}", "s_cmp_lg_u64 vcc, 0"]

    a.wait(vm=[("poll", 1)])
    for c in fail(1):
        a(c)
    a("s_cbranch_scc0 POLL1_OK")
    a.label("PHASE2")
    saved = list(a.vm)
    spin(a, "POLL1", poll, fail(1))
    a.vm = saved
    a.label("POLL1_OK")
    a(f"s_mul_i32 s53, s21, {2 * 112 * 1024}")
    a(f"s_mul_i32 s23, s18, {28 * 1024}")
    a("s_add_u32 s53, s53, s23")
    stamp(a, 6)
    bpl = 4 // NLEV
    order = [(line, b) for lev in range(NLEV) for line in range(7) for b in range(lev * bpl, (lev + 1) * bpl)]
    group = 28 // NLEV
    WIN = opts["win"]
    state = {"next": 0}

    def issue():
        t = state["next"]
        if t >= 28:
            return
        if t and t % group == 0:
            lev = t // group + 1
            a.wait(vm=[("poll", lev)])
            for c in fail(lev):
                a(c)
            a(f"s_cbranch_scc0 POLL{lev}_OK")
            saved = list(a.vm)
            spin(a, f"POLL{lev}", poll, fail(lev))
            a.vm = saved
            a.label(f"POLL{lev}_OK")
        line, b = order[t]
        h = HR + 8 * (t % 16)
        a(f"s_add_u32 s23, s53, {line * 4096}")
        a(f"s_add_u32 s54, s53, {line * 4096 + 112 * 1024}")
        a.vmem(f"buffer_load_dwordx4 {vr(h, 4)}, v{VL16}, s[32:35], s23 offen offset:{1024 * b} sc1", ("g", t))
        a.vmem(f"buffer_load_dwordx4 {vr(h + 4, 4)}, v{VL16}, s[32:35], s54 offen offset:{1024 * b} sc1", ("g", t))
        nxt_boundary = (t // group + 1) * group
        if nxt_boundary < 28 and t == max(nxt_boundary - WIN + opts["pollpos"] - 1, t // group * group):
            a.vmem(poll, ("poll", nxt_boundary // group + 1))
        state["next"] = t + 1

    for _ in range(min(WIN, group)):
        issue()
    a.wait_all(lg=True)
    for t in range(28):
        line, b = order[t]
        ks = 4 * line + b
        h = HR + 8 * (t % 16)
        a.wait(vm=[("g", t)])
        if t == 0:
            stamp(a, 7)
        for cb in range(2):
            for tb in range(2):
                acc = vr(ACC2 + 16 * (2 * tb + cb), 16)
                c = "0" if t == 0 else acc
                a(f"v_mfma_f32_32x32x16_bf16 {acc}, {vr(8 * ks + 4 * cb, 4, 'a')}, {vr(h + 4 * tb, 4)}, {c}")
            if cb == 0:
                while state["next"] < min(t + 1 + WIN, 28):
                    issue()
    stamp(a, 8)
    a("s_lshl_b32 s23, s18, 12")
    a(f"v_add_u32 v{VRED}, s23, v{VL16}")
    a("s_barrier")
    a("s_nop 7")
    a("s_nop 1")
    for t in range(4):
        for q in range(4):
            a(f"ds_write_b128 v{VRED}, {vr(ACC2 + 16 * t + 4 * q, 4)} offset:{t * 16384 + q * 1024}")
    a("s_lshl_b32 s23, s18, 14")
    a(f"v_add_u32 v{VRED}, s23, v{VL16}")
    a("s_waitcnt lgkmcnt(0)")
    a("s_barrier")
    R = HR
    for src in range(4):
        for q in range(4):
            a(f"ds_read_b128 {vr(R + 16 * src + 4 * q, 4)}, v{VRED} offset:{src * 4096 + q * 1024}")
    a("v_and_b32 v3, 31, v2")
    a("v_lshrrev_b32 v4, 5, v2")
    a("v_lshlrev_b32 v3, 10, v3")
    a(f"v_lshl_add_u32 v{VOUT}, v4, 4, v3")
    a("s_lshl_b32 s48, s21, 16")
    a("s_lshr_b32 s23, s18, 1")
    a("s_lshl_b32 s23, s23, 15")
    a("s_add_u32 s48, s48, s23")
    a("s_lshl_b32 s23, s22, 7")
    a("s_add_u32 s48, s48, s23")
    a("s_and_b32 s23, s18, 1")
    a("s_lshl_b32 s23, s23, 6")
    a("s_add_u32 s48, s48, s23")
    a("s_waitcnt lgkmcnt(0)")
    for e in range(0, 16, 2):
        a(f"v_pk_add_f32 {vr(R + e, 2)}, {vr(R + e, 2)}, {vr(R + 16 + e, 2)}")
        a(f"v_pk_add_f32 {vr(R + 32 + e, 2)}, {vr(R + 32 + e, 2)}, {vr(R + 48 + e, 2)}")
    for e in range(0, 16, 2):
        a(f"v_pk_add_f32 {vr(R + e, 2)}, {vr(R + e, 2)}, {vr(R + 32 + e, 2)}")
    for e in range(8):
        a(f"v_cvt_pk_bf16_f32 v{R + 16 + e}, v{R + 2 * e}, v{R + 2 * e + 1}")
    a("s_nop 1")
    for pr in range(2):
        b = R + 16 + 4 * pr
        a(f"v_permlane32_swap_b32 v{b}, v{b + 2}")
        a(f"v_permlane32_swap_b32 v{b + 1}, v{b + 3}")
    for pr in range(2):
        b = R + 16 + 4 * pr
        a(f"buffer_store_dwordx4 {vr(b, 4)}, v{VOUT}, s[44:47], s48 offen offset:{32 * pr}")
    if DIAG:
        a("s_waitcnt vmcnt(0)")
    stamp(a, 9)
    stamp_flush(a)


a = Asm()
a.raw(HEADER.rstrip())
a.raw(f"; @launch grid=(256,1,1) block=(256,1,1) lds={LDS_BYTES}")
a.raw('.amdgcn_target "amdgcn-amd-amdhsa--gfx950"')
kernel_begin(a, NAME)
prologue(a)
a("s_cmp_ge_u32 s58, 28")
a("s_cbranch_scc1 HELPER")
phase1(a)
phase2(a)
a.label("END")
a("s_endpgm")
helper(a)
kernel_desc(a, NAME, 512, 256, 102)
open(OUT, "w").write(a.text())
```
